```python
import torch

def _softmax(x, axis=-1):
    return torch.softmax(x, dim=axis)
def _gelu(x):
    return torch.nn.functional.gelu(x, approximate="tanh")
def _silu(x):
    return torch.nn.functional.silu(x)
def _sigmoid(x):
    return torch.sigmoid(x)
def _layernorm(x, axis=-1, eps=1e-5):
    m = x.mean(dim=axis, keepdim=True)
    v = x.var(dim=axis, keepdim=True, unbiased=False)
    return (x - m) / torch.sqrt(v + eps)
def _scatter_add(tgt, idx, src, axis=0):
    return tgt.clone().index_add_(axis, idx, src)
def _segment_sum(src, seg, n):
    out = torch.zeros((n,) + src.shape[1:], dtype=src.dtype)
    return out.index_add_(0, seg, src)
def _pad(x, pw):
    flat = tuple(v for pair in reversed(pw) for v in pair)
    return torch.nn.functional.pad(x, flat)

kernel_name = 'standalone__mha_block_cached__near_ridge'

def setup_inputs():

    _w = (lambda a: (lambda t: t.to(torch.bfloat16) if t.is_floating_point() else t)(torch.as_tensor(a)))
    B, Sq, D = 8, 208, 512
    H, Sk, Dh = 32, 512, 128
    return {
        "x": _w((lambda *s: torch.randn(*s, dtype=torch.bfloat16) * 0.8)(B, Sq, D)),
        "k_cache": _w((lambda *s: torch.randn(*s, dtype=torch.bfloat16) * 0.8)(B, H, Sk, Dh)),
        "v_cache": _w((lambda *s: torch.randn(*s, dtype=torch.bfloat16) * 0.05)(B, H, Sk, Dh)),
        "wq": _w((lambda *s: torch.randn(*s, dtype=torch.bfloat16) * 0.8)(D, H * Dh) * (D ** -0.5)),
        "wo": _w((lambda *s: torch.randn(*s, dtype=torch.bfloat16) * 0.05)(H * Dh, D) * ((H * Dh) ** -0.5)),
    }

def reference(x, k_cache, v_cache, wq, wo):
    B, Sq, D = x.shape
    H, Dh = 32, 128
    q = (lambda x, *d: x.permute(*d))((x @ wq).reshape(B, Sq, H, Dh), 0, 2, 1, 3)
    scores = torch.einsum("bhqd,bhkd->bhqk", q, k_cache) * (Dh ** -0.5)
    p = _softmax(scores, axis=-1)
    o = torch.einsum("bhqk,bhkd->bhqd", p, v_cache)
    return (lambda x, *d: x.permute(*d))(o, 0, 2, 1, 3).reshape(B, Sq, H * Dh) @ wo
```

```python
import re

def R(prefix, lo, n=1):
    if n == 1:
        return f"{prefix}{lo}"
    return f"{prefix}[{lo}:{lo+n-1}]"

def regs_of(op):
    op = op.strip()
    if op.startswith('-'):
        op = op[1:]
    m = re.fullmatch(r'([vas])(\d+)', op)
    if m:
        return {op}
    m = re.fullmatch(r'([vas])\[(\d+):(\d+)\]', op)
    if m:
        return {f"{m.group(1)}{i}" for i in range(int(m.group(2)), int(m.group(3)) + 1)}
    if op in ('vcc', 'exec', 'm0', 'scc'):
        return {op}
    return set()

class Ins:
    __slots__ = ('text', 'kind', 'reads', 'writes', 'srcc', 'tag', 'cost', 'data', 'passes')
    def __init__(self, text, kind, reads=(), writes=(), srcc=(), tag=None, cost=4, data=(), passes=0):
        self.text = text; self.kind = kind
        self.reads = set(reads); self.writes = set(writes); self.srcc = set(srcc)
        self.tag = tag; self.cost = cost; self.data = set(data); self.passes = passes
    def __repr__(self):
        return self.text

TRANS = ('v_exp_f32', 'v_rcp_f32', 'v_log_f32', 'v_rsq_f32', 'v_sqrt_f32')

def valu(op, dst, *srcs, extra='', rmw=False):
    rd = set()
    for s in srcs:
        rd |= regs_of(str(s))
    wr = regs_of(dst)
    if rmw:
        rd |= wr
    base = op.replace('_e32', '').replace('_e64', '')
    kind = 'trans' if base in TRANS else 'valu'
    if base.startswith('v_cndmask') and len(srcs) == 2:
        rd.add('vcc')
    txt = f"{op} {dst}, " + ", ".join(str(s) for s in srcs) + (" " + extra if extra else "")
    return Ins(txt, kind, rd, wr, cost=8 if kind == 'trans' else 4)

def salu(op, dst, *srcs, scc=True):
    rd = set()
    for s in srcs:
        rd |= regs_of(str(s))
    wr = regs_of(dst) if dst is not None else set()
    ops = ([dst] if dst is not None else []) + [str(s) for s in srcs]
    return Ins(f"{op} " + ", ".join(ops), 'salu', rd, wr, cost=4)

def mfma(shape, d, a, b, c):
    n = 16 if shape == 32 else 4
    op = 'v_mfma_f32_32x32x16_bf16' if shape == 32 else 'v_mfma_f32_16x16x32_bf16'
    cr = regs_of(str(c))
    return Ins(f"{op} {d}, {a}, {b}, {c}", 'mfma', regs_of(a) | regs_of(b) | cr, regs_of(d), srcc=cr,
               cost=8, passes=8 if shape == 32 else 4)

def ds_read(op, dst, addr, offset=0):
    assert 0 <= offset < 65536, offset
    return Ins(f"{op} {dst}, {addr}" + (f" offset:{offset}" if offset else ""), 'lds', regs_of(addr), regs_of(dst))

def ds_write(op, addr, src, offset=0):
    assert 0 <= offset < 65536, offset
    return Ins(f"{op} {addr}, {src}" + (f" offset:{offset}" if offset else ""), 'lds', regs_of(addr) | regs_of(src), (), cost=8)

def ds_bpermute(dst, addr, src):
    return Ins(f"ds_bpermute_b32 {dst}, {addr}, {src}", 'lds', regs_of(addr) | regs_of(src), regs_of(dst))

def buf_load(op, dst, voff, srd, soff, offset=0, flags='', tag=None):
    assert 0 <= offset < 4096
    t = f"{op} {dst}, {voff}, {srd}, {soff} offen" + (f" offset:{offset}" if offset else "") + (" " + flags if flags else "")
    return Ins(t, 'vmem', regs_of(voff) | regs_of(srd) | regs_of(str(soff)), regs_of(dst), tag=tag, cost=8)

def buf_dma(voff, srd, soff, offset=0, flags='', tag=None):
    assert 0 <= offset < 4096
    t = f"buffer_load_dwordx4 {voff}, {srd}, {soff} offen" + (f" offset:{offset}" if offset else "") + (" " + flags if flags else "") + " lds"
    return Ins(t, 'vmem', regs_of(voff) | regs_of(srd) | regs_of(str(soff)) | {'m0'}, (), tag=tag, cost=8)

def buf_store(op, src, voff, srd, soff, offset=0, flags='', tag=None):
    assert 0 <= offset < 4096
    t = f"{op} {src}, {voff}, {srd}, {soff} offen" + (f" offset:{offset}" if offset else "") + (" " + flags if flags else "")
    wide = op.endswith('x4') or op.endswith('x3')
    return Ins(t, 'vmem', regs_of(voff) | regs_of(srd) | regs_of(str(soff)) | regs_of(src), (), tag=tag, cost=8,
               data=regs_of(src) if wide else ())

def raw(text, kind='other', reads=(), writes=(), cost=4):
    return Ins(text, kind, reads, writes, cost=cost)

def label(name):
    return Ins(f"{name}:", 'label', cost=0)

def barrier():
    return Ins("s_barrier", 'barrier')

def wait_tags(*tags):
    return Ins("", 'wait_tag', tag=set(tags), cost=4)

def wait_lds_all():
    return Ins("", 'wait_lds', cost=4)

def wait_vm_all():
    return Ins("", 'wait_vm', cost=4)

def touch(*ops):
    rd = set()
    for o in ops: rd |= regs_of(o)
    return Ins("", 'pseudo', rd, (), cost=0)

def nop(n):
    return Ins(f"s_nop {n}", 'nop', cost=4 * (n + 1))

def reset_state():
    return Ins("", 'reset', cost=0)


def insert_waits(code):
    out = []
    lds = []
    vm = []
    def emit_wait(nl=None, nv=None):
        parts = []
        if nv is not None: parts.append(f"vmcnt({nv})")
        if nl is not None: parts.append(f"lgkmcnt({nl})")
        out.append(Ins("s_waitcnt " + " ".join(parts), 'wait'))
    for ins in code:
        if ins.kind == 'reset':
            lds = []; vm = []
            continue
        if ins.kind == 'wait_lds':
            if lds:
                emit_wait(nl=0); lds = []
            continue
        if ins.kind == 'wait_vm':
            if vm:
                emit_wait(nv=0); vm = []
            continue
        if ins.kind == 'wait_tag':
            idx = -1
            for i, (d, t) in enumerate(vm):
                if t in ins.tag: idx = i
            if idx >= 0:
                n = len(vm) - 1 - idx
                emit_wait(nv=n); vm = vm[idx + 1:]
            continue
        touched = ins.reads | ins.writes
        nl = nv = None
        if touched:
            idx = -1
            for i, d in enumerate(lds):
                if d & touched: idx = i
            if idx >= 0:
                nl = len(lds) - 1 - idx; lds = lds[idx + 1:]
            idx = -1
            for i, (d, t) in enumerate(vm):
                if d & touched: idx = i
            if idx >= 0:
                nv = len(vm) - 1 - idx; vm = vm[idx + 1:]
        if ins.kind == 'lds' and len(lds) >= 15:
            k = 14
            nl = k if nl is None else min(nl, k); lds = lds[len(lds) - k:]
        if ins.kind == 'vmem' and len(vm) >= 63:
            k = 62
            nv = k if nv is None else min(nv, k); vm = vm[len(vm) - k:]
        if nl is not None or nv is not None:
            emit_wait(nl, nv)
        out.append(ins)
        if ins.kind == 'lds':
            lds.append(set(ins.writes))
        elif ins.kind == 'vmem':
            vm.append((set(ins.writes), ins.tag))
    return out


def _states(ins):
    if ins.kind in ('label', 'pseudo'): return 0
    if ins.kind == 'nop':
        return int(ins.text.split()[1]) + 1
    return 1

def is_valu(i): return i.kind in ('valu', 'trans')

def need_states(p, c):
    n = 0
    vw = {r for r in p.writes if r[0] in 'va' and r not in ('vcc',)}
    sw = {r for r in p.writes if r[0] == 's' and r != 'scc'} | ({'vcc'} & p.writes)
    if is_valu(p):
        if c.kind == 'mfma' and (vw & c.reads): n = max(n, 2)
        if p.kind == 'trans' and is_valu(c) and c.kind != 'trans' and (vw & (c.reads | c.writes)): n = max(n, 1)
        if p.kind == 'trans' and c.kind == 'trans' and (vw & c.reads): n = max(n, 1)
        if p.kind == 'trans' and c.kind in ('lds', 'vmem') and (vw & c.reads): n = max(n, 1)
        if is_valu(c) and (sw & c.reads): n = max(n, 2)
        if c.kind == 'vmem' and (sw & c.reads): n = max(n, 5)
        if c.kind == 'salu' and (sw & c.reads): n = max(n, 1)
        if is_valu(c) and ('readfirstlane' in c.text or 'readlane' in c.text) and (vw & c.reads): n = max(n, 1)
        if is_valu(c) and 'permlane' in c.text and (vw & c.reads): n = max(n, 2)
        if 'exec' in p.writes and c.kind == 'mfma': n = max(n, 4)
    if p.kind == 'mfma':
        big = {8: 12, 4: 8}[p.passes]
        ovl = {8: 10, 4: 6}[p.passes]
        war = {8: 7, 4: 3}[p.passes]
        if c.kind == 'mfma':
            ab = c.reads - c.srcc
            if p.writes & ab: n = max(n, big)
            if p.writes & c.srcc:
                if not (p.writes == c.srcc and p.passes == c.passes): n = max(n, ovl)
            elif p.writes & c.writes:
                n = max(n, ovl)
        elif is_valu(c) or c.kind in ('lds', 'vmem'):
            if p.writes & (c.reads | c.writes): n = max(n, big)
            if is_valu(c) and (p.srcc & c.writes): n = max(n, war)
    if p.kind == 'salu' and 'm0' in p.writes and 'm0' in c.reads: n = max(n, 1)
    if p.kind == 'vmem' and p.data and (p.data & c.writes):
        n = max(n, 2 if is_valu(c) else 1)
    return n

def insert_hazard_nops(code, window=24):
    out = []
    for ins in code:
        if ins.kind in ('label', 'pseudo'):
            out.append(ins); continue
        dist = 0; need = 0
        for p in reversed(out[-window:]):
            req = need_states(p, ins)
            if req > dist:
                need = max(need, req - dist)
            dist += _states(p)
            if dist >= 13: break
        while need > 0:
            k = min(need, 16)
            out.append(nop(k - 1)); need -= k
        out.append(ins)
    return out

def finalize(code):
    return insert_hazard_nops(insert_waits(code))

def render(code):
    lines = []
    for i in code:
        if i.kind == 'label': lines.append(i.text)
        elif i.text: lines.append("    " + i.text)
    return "\n".join(lines) + "\n"

def interleave(mfmas, streams):
    n = len(mfmas)
    gaps = {g: [] for g in range(-1, n)}
    for items, lo, hi in streams:
        tot = sum(max(i.cost, 1) for i in items)
        acc = 0
        for it in items:
            g = lo + int((acc * (hi - lo)) // max(tot, 1))
            g = min(g, hi - 1)
            gaps[g].append(it)
            acc += max(it.cost, 1)
    out = list(gaps[-1])
    for g in range(n):
        out.append(mfmas[g]); out += gaps[g]
    return out
```

```python
import sys, math
from asmlib import *

NAME = "standalone__mha_block_cached__near_ridge"
CFG = dict(kvpos=2, dump=None)

v = lambda i, n=1: R('v', i, n)
a = lambda i, n=1: R('a', i, n)
s = lambda i, n=1: R('s', i, n)

sX, sW, sK, sV, sO = 20, 24, 28, 32, 36
sB, sH, sWv, sC0 = 40, 41, 42, 43
sT0, sT1, sT2, sT3 = 44, 45, 46, 47
sWM = 48
sXM = 53
sKVM = 54
sP = 55
sTHR = 56
sSC = 58
sRET = 60
sOA, sOB = 62, 63
sXo, sWo, sKo = 64, 65, 66

KR, VR = 0, 65536
XS = [36864, 98304]
WH = 126976
WPOS = {0: (WH + 3 * 4096, WH + 4 * 4096), 1: (32768, WH + 2 * 4096), 2: (WH, WH + 4096),
        3: (WH + 5 * 4096, WH + 6 * 4096), 4: (WH + 7 * 4096, WH + 8 * 4096)}
QX_SH = WH + 5 * 4096
QX_T6 = WH + 4096
CB_SH = 131072
CB_T6 = 0
CB_ST = 32768

vTID, vLANE = 0, 1
vT = [2, 3, 4, 5]
vT6 = [6, 7, 8, 9]
vM = list(range(8, 16))
vS = [16, 32]
vP = [48, 56]
vVH = 64
vNMo, vNMs = 96, 112
vKH = 128
vS6, vP6, vNM6 = 160, 168, 172
vKA, vKB, vVA, vVB, vK6, vV6 = 176, 184, 192, 196, 200, 204
vDK, vDV = 208, 212
vLo, vLs, vL6 = [213, 214], [215, 216], [217, 218]
vBP16, vBP32 = 219, 220
accO, accS, acc6 = 64, 32, 160
vWAH, vWAL, vW6H, vW6S = 222, 226, 230, 231
vXO, vXS_, vX6 = 232, 236, 240
vDX, vDW = 242, 249
aQo, aQs, aQ6 = 0, 32, 64
aOo, aOs, aO6 = 80, 144, 208
aP6 = 240
aXF = [80, 120]
aPOOL = 160
NPOOL = 12

SCALE = math.log2(math.e) / math.sqrt(128.0)
def f32bits(x):
    import struct
    return struct.unpack('<I', struct.pack('<f', x))[0]

def srd(c, d, lo, hi, nrec):
    c += [salu('s_mov_b32', s(d), s(lo)), salu('s_and_b32', s(d + 1), s(hi), '0xffff'),
          salu('s_mov_b32', s(d + 2), nrec), salu('s_mov_b32', s(d + 3), '0x20000')]

def add64(c, lo, off):
    c += [Ins(f"s_add_u32 {s(lo)}, {s(lo)}, {off}", 'salu', {s(lo)} | regs_of(str(off)), {s(lo), 'scc'}),
          Ins(f"s_addc_u32 {s(lo+1)}, {s(lo+1)}, 0", 'salu', {s(lo + 1), 'scc'}, {s(lo + 1), 'scc'})]

def dma_x(c_idx):
    o = []
    o += [salu('s_add_u32', s(sXo), s(sC0), c_idx), salu('s_and_b32', s(sXo), s(sXo), 7), salu('s_lshl_b32', s(sXo), s(sXo), 7)]
    for jj in range(7):
        if jj % 4 == 0:
            o.append(salu('s_add_u32', 'm0', s(sXM), XS[c_idx & 1] + (jj & 4) * 1024))
        o.append(buf_dma(v(vDX + jj), s(sX, 4), s(sXo), (jj & 3) * 1024, tag=('x', c_idx)))
    return o

def dma_w(i):
    o = [salu('s_lshl_b32', s(sWo), s(sC0), 1), salu('s_add_u32', s(sWo), s(sWo), i), salu('s_and_b32', s(sWo), s(sWo), 15),
         salu('s_lshl_b32', s(sWo), s(sWo), 18), salu('s_mov_b32', 'm0', s(sWM + i % 5))]
    for jj in range(2):
        o.append(buf_dma(v(vDW + jj), s(sW, 4), s(sWo), jj * 1024, tag=('w', i)))
    return o

def dma_k(n):
    o = [salu('s_mov_b32', s(sKo), n * 16384), salu('s_add_u32', 'm0', s(sKVM), KR + (n & 3) * 16384)]
    for jj in range(4):
        o.append(buf_dma(v(vDK + jj), s(sK, 4), s(sKo), jj * 1024, flags='nt', tag=('k', n)))
    return o

def dma_v(n):
    o = [salu('s_mov_b32', s(sKo), n * 16384), salu('s_add_u32', 'm0', s(sKVM), VR + (n & 3) * 16384)]
    for jj in range(4):
        o.append(buf_dma(v(vDV), s(sV, 4), s(sKo), jj * 1024, flags='nt', tag=('v', n)))
    return o

def softmax_stream(S, P, lold, lnew, n, T, add_negm=None):
    ops = []
    NT = len(T)
    for i in range(n + 1):
        if i < n:
            if add_negm is not None:
                ops.append(valu('v_add_f32', v(S + i), v(add_negm), v(S + i)))
            ops.append(valu('v_exp_f32', v(T[i % NT]), v(S + i)))
        j = i - 1
        if j >= 0:
            if j == 0:
                if lold is not None:
                    ops.append(valu('v_add_f32', v(lnew), v(lold), v(T[0])))
                else:
                    ops.append(valu('v_mov_b32', v(lnew), v(T[0])))
            else:
                ops.append(valu('v_add_f32', v(lnew), v(lnew), v(T[j % NT])))
            if j & 1:
                ops.append(valu('v_cvt_pk_bf16_f32', v(P + j // 2), v(T[(j - 1) % NT]), v(T[j % NT])))
    return ops

def rowmax(S, n, dst, tmp, six=False):
    o = [valu('v_max_f32', v(dst), v(S), v(S + 1))]
    for i in range(2, n, 2):
        o.append(valu('v_max3_f32', v(dst), v(dst), v(S + i), v(S + i + 1)))
    if six:
        o += [ds_bpermute(v(tmp), v(vBP16), v(dst)), valu('v_max_f32', v(dst), v(dst), v(tmp))]
    o += [ds_bpermute(v(tmp), v(vBP32), v(dst)), valu('v_max_f32', v(dst), v(dst), v(tmp))]
    return o

def first_stream(S, P, lnew, n, T, NM, nnm, six=False):
    mx, tmp = T[0], T[1]
    o = rowmax(S, n, mx, tmp, six)
    o.append(valu('v_sub_f32', v(NM), 0, v(mx)))
    for i in range(1, nnm):
        o.append(valu('v_mov_b32', v(NM + i), v(NM)))
    o += softmax_stream(S, P, None, lnew, n, T, add_negm=NM)
    return o

def rare_routine(name, S, P, lold, lnew, n, NM, nnm, O, nO, pend=None, six=False):
    c = [label(name), reset_state(), nop(15), nop(15), raw("s_waitcnt lgkmcnt(0)", 'wait')]
    mx, tmp, f = vM[2], vM[3], vM[4]
    c += rowmax(S, n, mx, tmp, six)
    c.append(valu('v_max_f32', v(mx), 0, v(mx)))
    c.append(valu('v_exp_f32_e64', v(f), '-' + v(mx)))
    tt = [vM[5], vM[6], vM[7]]
    for i in range(nO):
        t = tt[i % 3]
        c += [valu('v_accvgpr_read_b32', v(t), a(O + i)), valu('v_mul_f32', v(t), v(f), v(t)), valu('v_accvgpr_write_b32', a(O + i), v(t))]
    c.append(valu('v_mul_f32', v(lold), v(f), v(lold)))
    for i in range(nnm):
        c.append(valu('v_sub_f32', v(NM + i), v(NM + i), v(mx)))
    for i in range(n):
        c.append(valu('v_sub_f32', v(S + i), v(S + i), v(mx)))
    if pend is not None:
        for i in range(16):
            c.append(valu('v_sub_f32', v(pend + i), v(pend + i), v(mx)))
    c += softmax_stream(S, P, lold, lnew, n, [vM[3], vM[5], vM[6], vM[7]])
    c += [nop(3), raw(f"s_setpc_b64 {s(sRET,2)}", 'branch')]
    return c

def gen_attn():
    c = []
    L = lambda x: f"L1_{x}"
    c.append(raw("s_load_dwordx16 s[4:19], s[0:1], 0", 'smem'))
    c += [raw("s_cmp_ge_u32 s2, 256", 'salu'), raw(f"s_cbranch_scc1 {L('end')}", 'branch')]
    c += [valu('v_and_b32', v(vLANE), 63, v(vTID)), valu('v_lshrrev_b32', v(vM[0]), 6, v(vTID)),
          valu('v_readfirstlane_b32', s(sWv), v(vM[0]))]
    c += [salu('s_and_b32', s(sT0), 's2', 7), salu('s_lshr_b32', s(sT1), 's2', 3),
          salu('s_and_b32', s(sB), s(sT0), 1), salu('s_lshl_b32', s(sB), s(sB), 2), salu('s_and_b32', s(sT2), s(sT1), 3),
          salu('s_add_u32', s(sB), s(sB), s(sT2)),
          salu('s_lshr_b32', s(sH), s(sT0), 1), salu('s_lshl_b32', s(sH), s(sH), 3), salu('s_lshr_b32', s(sT2), s(sT1), 2),
          salu('s_add_u32', s(sH), s(sH), s(sT2)),
          salu('s_lshl_b32', s(sC0), s(sB), 1), salu('s_add_u32', s(sC0), s(sC0), s(sH)), salu('s_and_b32', s(sC0), s(sC0), 7),
          salu('s_and_b32', s(sP), s(sWv), 1),
          salu('s_mul_i32', s(sXM), s(sWv), 7 * 1024), salu('s_lshl_b32', s(sKVM), s(sWv), 12)]
    c += [salu('s_lshl_b32', s(sT0), s(sWv), 11)]
    for sl in (0, 2, 3, 4):
        c.append(salu('s_add_u32', s(sWM + sl), s(sT0), WPOS[sl][0]))
    c += [salu('s_lshl_b32', s(sT1), s(sP), 11), raw(f"s_cmp_lt_u32 {s(sWv)}, 2", 'salu', {s(sWv)}, {'scc'}),
          salu('s_cselect_b32', s(sWM + 1), WPOS[1][0], s(sT0)),
          ]
    c.pop()
    c += [salu('s_mov_b32', s(sT2), WPOS[1][1]), salu('s_cselect_b32', s(sWM + 1), WPOS[1][0], s(sT2)),
          salu('s_add_u32', s(sWM + 1), s(sWM + 1), s(sT1))]
    m0_, m1_, m2_, m3_ = vM[0], vM[1], vM[2], vM[3]
    c += [valu('v_lshrrev_b32', v(m0_), 3, v(vLANE)),
          valu('v_lshrrev_b32', v(m1_), 4, v(vLANE)),
          valu('v_and_b32', v(m2_), 7, v(vLANE)),
          salu('s_mul_i32', s(sT0), s(sWv), 7)]
    for jj in range(7):
        c += [salu('s_add_u32', s(sT1), s(sT0), jj), salu('s_lshl_b32', s(sT2), s(sT1), 2),
              valu('v_add_u32', v(m3_), s(sT2), v(m1_)), valu('v_and_b32', v(m3_), 7, v(m3_)), valu('v_xor_b32', v(m3_), v(m3_), v(m2_)),
              valu('v_lshlrev_b32', v(m3_), 4, v(m3_)),
              valu('v_lshl_add_u32', v(m3_), v(m0_), 10, v(m3_)),
              salu('s_lshl_b32', s(sT2), s(sT1), 13), salu('s_sub_u32', s(sT2), s(sT2), (jj & 3) * 1024),
              valu('v_add_u32', v(vDX + jj), s(sT2), v(m3_))]
    c += [valu('v_and_b32', v(m2_), 15, v(vLANE)), valu('v_lshlrev_b32', v(m3_), 2, v(m1_)), valu('v_xor_b32', v(m3_), v(m3_), v(m2_)),
          valu('v_lshlrev_b32', v(m3_), 4, v(m3_)),
          valu('v_lshl_add_u32', v(vDW), v(m1_), 13, v(m3_)),
          salu('s_lshl_b32', s(sT0), s(sWv), 16),
          valu('v_add_u32', v(vDW), s(sT0), v(vDW)),
          valu('v_add_u32', v(vDW + 1), 32768 - 1024, v(vDW)),
          valu('v_lshl_add_u32', v(vDV), v(m1_), 8, v(m3_)),
          valu('v_add_u32', v(vDV), s(sKVM), v(vDV))]
    for jj in range(4):
        c += [valu('v_xor_b32', v(m3_), v(m1_), v(m2_)), valu('v_xor_b32', v(m3_), 4 * jj, v(m3_)), valu('v_lshlrev_b32', v(m3_), 4, v(m3_)),
              valu('v_lshl_add_u32', v(vDK + jj), v(m1_), 8, v(m3_)), valu('v_add_u32', v(vDK + jj), s(sKVM), v(vDK + jj))]
    c.append(raw("s_waitcnt lgkmcnt(0)", 'wait'))
    c.append(salu('s_mul_i32', s(sT0), s(sB), 212992)); add64(c, 4, s(sT0)); srd(c, sX, 4, 5, 212992)
    c.append(salu('s_lshl_b32', s(sT0), s(sH), 8)); add64(c, 10, s(sT0))
    c.append(salu('s_sub_u32', s(sT1), 4194304, s(sT0))); srd(c, sW, 10, 11, s(sT1))
    c += dma_x(0) + dma_w(0) + dma_w(1) + dma_x(1) + dma_w(2) + dma_w(3)
    c += [salu('s_lshl_b32', s(sT0), s(sB), 5), salu('s_add_u32', s(sT0), s(sT0), s(sH)), salu('s_lshl_b32', s(sT0), s(sT0), 17)]
    add64(c, 6, s(sT0)); srd(c, sK, 6, 7, 131072)
    add64(c, 8, s(sT0)); srd(c, sV, 8, 9, 131072)
    c += [salu('s_mul_i32', s(sT0), s(sB), 13 * 128), salu('s_lshl_b32', s(sT1), s(sH), 2), salu('s_add_u32', s(sT0), s(sT0), s(sT1)),
          salu('s_lshl_b32', s(sT0), s(sT0), 10)]
    add64(c, 18, s(sT0)); srd(c, sO, 18, 19, 12 * 131072 + 4096)
    kv0 = dma_k(0) + dma_v(0) + dma_k(1) + dma_v(1)
    if CFG['kvpos'] < 0:
        c += kv0
    c += [salu('s_mov_b32', s(sTHR), hex(f32bits(2.0 ** 30))), salu('s_mov_b32', s(sSC), hex(f32bits(SCALE))), salu('s_mov_b32', s(sSC + 1), hex(f32bits(SCALE))),
          salu('s_lshl_b32', s(sOA), s(sP), 11), salu('s_xor_b32', s(sOB), s(sOA), 2048)]
    G, r_, c_, t0, t1, t2, t3, t4 = vM
    c += [valu('v_lshrrev_b32', v(G), 4, v(vLANE)), valu('v_bfe_u32', v(r_), v(vLANE), 2, 2), valu('v_and_b32', v(c_), 3, v(vLANE))]
    c += [valu('v_lshrrev_b32', v(t0), 1, v(G)), valu('v_lshl_add_u32', v(t0), v(t0), 3, v(r_)), valu('v_lshlrev_b32', v(t0), 8, v(t0)),
          valu('v_and_b32', v(t1), 1, v(G)), valu('v_lshl_add_u32', v(t0), v(t1), 5, v(t0)),
          valu('v_and_b32', v(t2), 1, v(c_)), valu('v_lshl_add_u32', v(t0), v(t2), 4, v(t0)),
          valu('v_lshrrev_b32', v(t2), 1, v(c_)), valu('v_lshl_add_u32', v(t0), v(t2), 3, v(t0)),
          salu('s_lshl_b32', s(sT0), s(sP), 1),
          valu('v_xor_b32', v(t3), s(sT0), v(r_))]
    for d in range(4):
        c += [valu('v_xor_b32', v(t2), d, v(t3)), valu('v_lshl_add_u32', v(vWAL + d), v(t2), 6, v(t0)),
              valu('v_add_u32', v(vWAH + d), WH, v(vWAL + d))]
    c += [valu('v_lshrrev_b32', v(t0), 1, v(G)), valu('v_lshl_add_u32', v(t0), v(t0), 2, v(r_)), valu('v_lshlrev_b32', v(t0), 8, v(t0)),
          valu('v_lshl_add_u32', v(t0), v(t1), 5, v(t0)), valu('v_lshl_add_u32', v(t0), v(c_), 3, v(t0)),
          salu('s_lshl_b32', s(sT1), s(sP), 13), salu('s_add_u32', s(sT2), s(sT1), VR),
          valu('v_add_u32', v(t0), s(sT2), v(t0))]
    for d in range(4):
        c += [valu('v_xor_b32', v(t2), d, v(t3)), valu('v_lshl_add_u32', v(vVA + d), v(t2), 6, v(t0)),
              valu('v_xor_b32', v(vVB + d), 8192, v(vVA + d))]
    c += [valu('v_lshl_add_u32', v(t0), v(G), 3, v(r_)), valu('v_lshlrev_b32', v(t0), 8, v(t0)),
          valu('v_xor_b32', v(t4), s(sWv), v(r_)),
          valu('v_lshl_add_u32', v(t0), v(t4), 6, v(t0)), valu('v_lshl_add_u32', v(t0), v(c_), 4, v(t0)),
          valu('v_add_u32', v(vW6H), WH, v(t0)),
          valu('v_mov_b32', v(t1), WPOS[1][0]), valu('v_mov_b32', v(t2), WPOS[1][1] - 4096),
          valu('v_cmp_gt_u32', 'vcc', 2, v(G)),
          valu('v_cndmask_b32', v(t1), v(t2), v(t1), 'vcc'),
          valu('v_add_u32', v(vW6S), v(t1), v(t0))]
    c += [valu('v_lshl_add_u32', v(t0), v(G), 2, v(r_)), valu('v_lshlrev_b32', v(t0), 8, v(t0)),
          valu('v_lshrrev_b32', v(t2), 1, v(c_)), valu('v_lshl_add_u32', v(t0), v(t2), 5, v(t0)),
          valu('v_and_b32', v(t2), 1, v(c_)), valu('v_lshl_add_u32', v(t0), v(t2), 3, v(t0)),
          salu('s_lshl_b32', s(sT2), s(sWv), 13), salu('s_add_u32', s(sT3), s(sT2), VR),
          valu('v_add_u32', v(t0), s(sT3), v(t0))]
    for j in range(4):
        c += [valu('v_xor_b32', v(t2), j, v(t4)), valu('v_lshl_add_u32', v(vV6 + j), v(t2), 6, v(t0))]
    c += [valu('v_and_b32', v(t0), 31, v(vLANE)), valu('v_lshrrev_b32', v(t1), 5, v(vLANE)), valu('v_and_b32', v(t2), 15, v(vLANE)),
          valu('v_xor_b32', v(t2), v(t2), v(t1)), salu('s_lshl_b32', s(sT0), s(sP), 3), valu('v_xor_b32', v(t2), s(sT0), v(t2)),
          valu('v_lshlrev_b32', v(t3), 8, v(t0)), valu('v_add_u32', v(t3), s(sT1), v(t3))]
    for sp in range(8):
        c += [valu('v_xor_b32', v(t4), 2 * sp, v(t2)), valu('v_lshl_add_u32', v(vKA + sp), v(t4), 4, v(t3)),
              valu('v_xor_b32', v(vKB + sp), 8192, v(vKA + sp))]
    c += [valu('v_bfe_u32', v(t2), v(vLANE), 1, 3), valu('v_xor_b32', v(t2), v(t2), v(t1)), valu('v_lshlrev_b32', v(t3), 7, v(t0)),
          salu('s_add_u32', s(sT0), s(sKVM), XS[0]),
          salu('s_lshr_b32', s(sT3), s(sWv), 1), salu('s_lshl_b32', s(sT3), s(sT3), 12), salu('s_add_u32', s(sT3), s(sT3), XS[0] + 4 * 4096)]
    for sp in range(4):
        c += [valu('v_xor_b32', v(t4), 2 * sp, v(t2)), valu('v_lshl_add_u32', v(t4), v(t4), 4, v(t3)),
              valu('v_add_u32', v(vXO + sp), s(sT0), v(t4)), valu('v_add_u32', v(vXS_ + sp), s(sT3), v(t4))]
    c += [valu('v_and_b32', v(t0), 15, v(vLANE)), valu('v_xor_b32', v(t2), v(t0), v(G)), valu('v_lshlrev_b32', v(t3), 8, v(t0)),
          valu('v_add_u32', v(t3), s(sT2), v(t3))]
    for sp in range(4):
        c += [valu('v_xor_b32', v(t4), 4 * sp, v(t2)), valu('v_lshl_add_u32', v(vK6 + sp), v(t4), 4, v(t3))]
    c += [valu('v_bfe_u32', v(t2), v(vLANE), 1, 3), valu('v_xor_b32', v(t2), v(t2), v(G)), valu('v_lshlrev_b32', v(t3), 7, v(t0)),
          valu('v_add_u32', v(t3), XS[0] + 192 * 128, v(t3))]
    for sp in range(2):
        c += [valu('v_xor_b32', v(t4), 4 * sp, v(t2)), valu('v_lshl_add_u32', v(vX6 + sp), v(t4), 4, v(t3))]
    c += [valu('v_xor_b32', v(t0), 16, v(vLANE)), valu('v_lshlrev_b32', v(vBP16), 2, v(t0)),
          valu('v_xor_b32', v(t0), 32, v(vLANE)), valu('v_lshlrev_b32', v(vBP32), 2, v(t0))]

    def x_reads(ci):
        base = aXF[ci & 1]; off = XS[ci & 1] - XS[0]
        o = []
        for sp in range(4):
            o.append(ds_read('ds_read_b128', a(base + 4 * sp, 4), v(vXO + sp), off))
            o.append(ds_read('ds_read_b128', a(base + 16 + 4 * sp, 4), v(vXS_ + sp), off))
            if sp % 2 == 0:
                o.append(ds_read('ds_read_b128', a(base + 32 + 4 * (sp // 2), 4), v(vX6 + sp // 2), off))
        return o
    frag_reads = []
    frag_users = []
    for i in range(16):
        sl = i % 5; ci = i // 2; xb = aXF[ci & 1]
        first = (i == 0)
        order = []
        for ks in range(2):
            for d in range(4): order.append(('w', ks, d))
            if ks == 0 and i == 15:
                order += [('6', 0, 0), ('6', 0, 1)]
        if i != 15: order += [('6', 0, 0), ('6', 0, 1)]
        for (kind, ks, d) in order:
            fi = len(frag_reads)
            dst = aPOOL + 4 * (fi % NPOOL)
            if kind == 'w':
                unit = WPOS[sl][ks]
                if unit >= WH: ad, off = vWAH + d, unit - WH
                else: ad, off = vWAL + d, unit
                rd = [ds_read('ds_read_b64_tr_b16', a(dst, 2), v(ad), off), ds_read('ds_read_b64_tr_b16', a(dst + 2, 2), v(ad), off + 1024)]
                sp = (i & 1) * 2 + ks
                cz = first and ks == 0
                us = []
                if d < 2:
                    D = v(accS + 16 * d, 16)
                    us.append(mfma(32, D, a(dst, 4), a(xb + 16 + 4 * sp, 4), '0' if cz else D))
                D = v(accO + 16 * d, 16)
                us.append(mfma(32, D, a(dst, 4), a(xb + 4 * sp, 4), '0' if cz else D))
            else:
                if sl == 1: ad, off = vW6S, 0
                else: ad, off = vW6H, WPOS[sl][0] - WH
                off += 8 * d
                rd = [ds_read('ds_read_b64_tr_b16', a(dst, 2), v(ad), off), ds_read('ds_read_b64_tr_b16', a(dst + 2, 2), v(ad), off + 1024)]
                D = v(acc6 + 4 * d, 4)
                us = [mfma(16, D, a(dst, 4), a(xb + 32 + 4 * (i & 1), 4), '0' if first else D)]
            frag_reads.append(rd); frag_users.append(us)
    LA = 5
    c += [wait_tags(('x', 0), ('w', 0)), barrier()]
    c += x_reads(0)
    for f in range(LA): c += frag_reads[f]
    kA0 = [ds_read('ds_read_b128', v(vKH + 4 * sp, 4), v(vKA + sp), 0) for sp in range(8)]
    for i in range(16):
        ci = i // 2
        tags = []
        if i + 1 < 16: tags.append(('w', i + 1))
        if i & 1 and ci + 1 < 8: tags.append(('x', ci + 1))
        if i == 15: tags.append(('k', 0))
        if i % 2 == 0:
            xb = aXF[ci & 1]
            c.append(touch(a(xb, 40)))
        c += [wait_tags(*tags), barrier()]
        extra = []
        if i + 4 < 16: extra += dma_w(i + 4)
        if i % 2 == 0 and ci + 2 < 8: extra += dma_x(ci + 2)
        if i == CFG['kvpos']: extra += kv0
        if i == 12: extra += dma_k(2) + dma_k(3)
        if i == 14: extra += dma_v(2) + dma_v(3)
        xr = x_reads(ci + 1) if (i & 1 and ci + 1 < 8) else []
        if i == 15: xr = kA0
        body = []
        mlist = []
        nfr = 10
        seq = []
        for f in range(i * nfr, (i + 1) * nfr):
            for u in frag_users[f]: seq.append(u)
            if f + LA < len(frag_reads): seq += frag_reads[f + LA]
        add = extra + xr
        nm = sum(1 for x in seq if x.kind == 'mfma')
        per = -(-len(add) // max(nm - 2, 1))
        out = []
        for x in seq:
            out.append(x)
            if x.kind == 'mfma' and add:
                out += add[:per]; add = add[per:]
        out += add
        c += out

    def conv(acc, n, dstv):
        o = []
        for i in range(0, n, 2):
            o.append(valu('v_pk_mul_f32', v(acc + i, 2), v(acc + i, 2), s(sSC, 2)))
        for i in range(0, n, 2):
            o.append(valu('v_cvt_pk_bf16_f32', v(dstv + i // 2), v(acc + i), v(acc + i + 1)))
        return o
    ln16 = vM[0]; pa = vM[1]; pb = vM[2]
    c += [valu('v_lshlrev_b32', v(ln16), 4, v(vLANE)),
          salu('s_add_u32', s(sT0), s(sKVM), QX_SH), valu('v_add_u32', v(pa), s(sT0), v(ln16)),
          salu('s_lshl_b32', s(sT1), s(sWv), 10), salu('s_add_u32', s(sT1), s(sT1), QX_T6), valu('v_add_u32', v(pb), s(sT1), v(ln16))]
    c += conv(acc6, 8, acc6)
    c.append(ds_write('ds_write_b128', v(pb), v(acc6, 4)))
    c += conv(accS, 32, accS)
    for f in range(4):
        c.append(ds_write('ds_write_b128', v(pa), v(accS + 4 * f, 4), f * 1024))
    for i in range(16):
        c.append(valu('v_accvgpr_write_b32', a(aQs + i), v(accS + i)))
    c += [valu('v_xor_b32', v(pa), 4096, v(pa)), valu('v_add_u32', v(pb), QX_T6, v(ln16))]
    c += [wait_lds_all(), barrier()]
    for f in range(4):
        c.append(ds_read('ds_read_b128', a(aQs + 16 + 4 * f, 4), v(pa), f * 1024))
    for f in range(4):
        c.append(ds_read('ds_read_b128', a(aQ6 + 4 * f, 4), v(pb), f * 1024))

    if CFG['dump'] == 'q':
        c += conv(accO, 64, accO)
        for i in range(32):
            c.append(valu('v_accvgpr_write_b32', a(aQo + i), v(accO + i)))
        c += [raw("s_load_dwordx2 s[70:71], s[0:1], 56", 'smem'), raw("s_waitcnt lgkmcnt(0)", 'wait'), reset_state(),
              salu('s_mul_i32', s(sT0), 's2', 81920), salu('s_mul_i32', s(sT1), s(sWv), 20480), salu('s_add_u32', s(sT0), s(sT0), s(sT1))]
        add64(c, 70, s(sT0)); srd(c, 72, 70, 71, 20480)
        for f in range(20):
            c += [salu('s_mov_b32', s(sT2), f * 1024), buf_store('buffer_store_dwordx4', a(4 * f, 4), v(ln16), s(72, 4), s(sT2))]
        c += [wait_vm_all(), label(L('end')), raw("s_endpgm", 'branch')]
        return finalize(c)

    stubs = []
    def check(lreg, rname, idx):
        stubs.append((idx, rname))
        return [valu('v_cmp_lt_f32', 'vcc', s(sTHR), v(lreg)), raw(f"s_cbranch_vccnz {L('stub%d' % idx)}", 'branch', {'vcc'}), label(L('back%d' % idx))]

    def unit(k):
        j = k % 3; n = k // 3
        if j == 1:
            return dict(Q=aQs, O=aOs, NM=vNMs, lold=vLs[n & 1], lnew=vLs[(n + 1) & 1], first=(n == 0), firstpv=(n == 0))
        return dict(Q=aQo, O=aOo, NM=vNMo, lold=vLo[0 if j == 0 else 1], lnew=vLo[1 if j == 0 else 0], first=(k == 0), firstpv=(k == 0))

    def S_mfmas(k):
        u = unit(k); D = v(vS[k & 1], 16)
        return [mfma(32, D, v(vKH + 4 * sp, 4), a(u['Q'] + 4 * sp, 4), ('0' if u['first'] else v(u['NM'], 16)) if sp == 0 else D) for sp in range(8)]
    def PV_mfmas(k):
        u = unit(k); o = []
        for t in range(2):
            for d in range(4):
                D = a(u['O'] + 16 * d, 16)
                o.append(mfma(32, D, v(vVH + 4 * (4 * t + d), 4), v(vP[k & 1] + 4 * t, 4), '0' if (u['firstpv'] and t == 0) else D))
        return o
    def K_reads(n, ad):
        return [ds_read('ds_read_b128', v(vKH + 4 * sp, 4), v(ad + sp), (n & 3) * 16384) for sp in range(8)]
    def V_reads(n, ad):
        o = []
        for t in range(2):
            for d in range(4):
                off = (n & 3) * 16384 + t * 4096
                dst = vVH + 4 * (4 * t + d)
                o += [ds_read('ds_read_b64_tr_b16', v(dst, 2), v(ad + d), off), ds_read('ds_read_b64_tr_b16', v(dst + 2, 2), v(ad + d), off + 2048)]
        return o
    def X_stream(k):
        u = unit(k)
        if u['first']:
            return first_stream(vS[k & 1], vP[k & 1], u['lnew'], 16, vT, u['NM'], 16), []
        return softmax_stream(vS[k & 1], vP[k & 1], u['lold'], u['lnew'], 16, vT), check(u['lnew'], L('rare%d' % (k % 6)), k)
    def T6_S(m):
        rds, mfs = [], []
        for kt in range(2):
            for sp in range(4):
                f = kt * 4 + sp; dst = aP6 + 4 * (f % 4)
                rds.append([ds_read('ds_read_b128', a(dst, 4), v(vK6 + sp), (m & 1) * 32768 + kt * 4096)])
                D = v(vS6 + 4 * kt, 4)
                mfs.append(mfma(16, D, a(dst, 4), a(aQ6 + 4 * sp, 4), ('0' if m == 0 else v(vNM6, 4)) if sp == 0 else D))
        return rds, mfs
    def T6_PV(m):
        rds, mfs = [], []
        for j in range(4):
            for tb in range(2):
                f = j * 2 + tb; dst = aP6 + 4 * (f % 4)
                off = (m & 1) * 32768 + 16 * tb
                rds.append([ds_read('ds_read_b64_tr_b16', a(dst, 2), v(vV6 + j), off), ds_read('ds_read_b64_tr_b16', a(dst + 2, 2), v(vV6 + j), off + 4096)])
                D = a(aO6 + 4 * f, 4)
                mfs.append(mfma(16, D, a(dst, 4), v(vP6, 4), '0' if m == 0 else D))
        return rds, mfs

    x6_pending = []
    for k in range(26):
        j = k % 3; n = k // 3
        Sm = S_mfmas(k) if k < 24 else []
        Pm = PV_mfmas(k - 2) if k >= 2 else []
        streams = []
        pre, post = [], []
        if k == 0:
            for sp in range(8):
                acc = accO + 8 * sp
                c += conv(acc, 8, acc)
                for i in range(4):
                    c.append(valu('v_accvgpr_write_b32', a(aQo + 4 * sp + i), v(acc + i)))
                c.append(Sm[sp])
            continue
        dmas = []
        if j == 2:
            tags = [('v', n)] + ([('k', n + 1)] if n + 1 < 8 else [])
            pre += [touch(v(vKH, 32)), wait_tags(*tags), barrier()]
            if n & 1:
                if n + 3 < 8: dmas += dma_k(n + 3) + dma_k(n + 4)
            else:
                if 4 <= n + 2 < 8: dmas += dma_v(n + 2) + dma_v(n + 3)
        t6r, t6m = [], []
        if k % 6 == 3:
            t6r, t6m = T6_S(k // 6)
        elif k % 6 == 0 and k >= 6:
            t6r, t6m = T6_PV(k // 6 - 1)
        nS, nP = len(Sm), len(Pm)
        if k == 24:
            mf = Pm + t6m; t6lo = nP
        else:
            mf = Sm + t6m + Pm; t6lo = nS
        nM = len(mf)
        if 1 <= k <= 24:
            xs, chk = X_stream(k - 1)
            streams.append((xs, 0 if k > 1 else 1, nM))
            post += chk
        if j == 1 and k < 25:
            if n >= 1: streams.append((V_reads(n - 1, vVB), -1, nS - 1))
            if k < 24: streams.append((K_reads(n, vKB), nS, nM if nM > nS else nS) if nM > nS else (K_reads(n, vKB), nS - 1, nS))
        if j == 2:
            streams.append((V_reads(n, vVA), -1, nS - 1))
            if n + 1 < 8: streams.append((K_reads(n + 1, vKA), nS, nM))
        if k == 24:
            streams.append((V_reads(7, vVB), nP - 1, nM))
        if t6r:
            early = [x for f in range(4) for x in t6r[f]]
            streams.append((early, max(t6lo - 6, -1), max(t6lo - 2, 0)))
            for f in range(4, 8):
                streams.append((t6r[f], t6lo + f - 4, t6lo + f - 3))
        if dmas:
            streams.append((dmas, 0, nM))
        if k % 6 == 3:
            m = k // 6
            if m == 0:
                x6 = first_stream(vS6, vP6, vL6[0], 8, vT6, vNM6, 4, six=True)
            else:
                x6 = softmax_stream(vS6, vP6, vL6[0], vL6[1], 8, vT6)
            h1 = len(x6) // 2; h2 = h1 + len(x6) // 4
            streams.append((x6[:h1], t6lo + 8 + 2, nM))
            x6_pending = [x6[h1:h2], x6[h2:]]
        elif k % 6 in (4, 5) and x6_pending:
            streams.append((x6_pending.pop(0), 0, nM))
            if k % 6 == 5 and k // 6 > 0:
                post += check(vL6[1], L('rare6'), 100 + k // 6) + [valu('v_mov_b32', v(vL6[0]), v(vL6[1]))]
        if k == 25:
            snd = []
            ln16, e1, e2, e3 = vM[0], vM[1], vM[2], vM[3]
            lsf = vLs[0]
            snd += [valu('v_lshlrev_b32', v(ln16), 4, v(vLANE)),
                    salu('s_lshl_b32', s(sT0), s(sWv), 13), salu('s_add_u32', s(sT0), s(sT0), CB_SH), valu('v_add_u32', v(e1), s(sT0), v(ln16))]
            for f in range(8):
                snd.append(ds_write('ds_write_b128', v(e1), a(aOs + 32 + 4 * f, 4), f * 1024))
            snd += [valu('v_mov_b32', v(vM[4]), v(vNMs)), valu('v_mov_b32', v(vM[5]), v(lsf)), valu('v_mov_b32', v(vM[6]), v(vNM6)), valu('v_mov_b32', v(vM[7]), v(vL6[0])),
                    salu('s_lshl_b32', s(sT1), s(sWv), 10), salu('s_add_u32', s(sT1), s(sT1), CB_ST), valu('v_add_u32', v(e2), s(sT1), v(ln16)),
                    ds_write('ds_write_b128', v(e2), v(vM[4], 4))]
            for jp in range(1, 4):
                snd += [salu('s_xor_b32', s(sT2), s(sWv), jp), salu('s_mul_i32', s(sT2), s(sT2), 6144), salu('s_add_u32', s(sT2), s(sT2), CB_T6 + (jp - 1) * 2048),
                        valu('v_add_u32', v(e3), s(sT2), v(ln16)),
                        ds_write('ds_write_b128', v(e3), a(aO6 + 8 * jp, 4)), ds_write('ds_write_b128', v(e3), a(aO6 + 8 * jp + 4, 4), 1024)]
            streams.append((snd, 1, nM))
        c += pre + interleave(mf, streams) + post

    ln16, e1, e2, e3 = vM[0], vM[1], vM[2], vM[3]
    c += [wait_lds_all(), barrier()]
    RS = vKH
    R6 = vVH
    ST = vS[0]
    c.append(valu('v_xor_b32', v(e1), 8192, v(e1)))
    for jp in range(1, 4):
        c += [valu('v_xor_b32', v(e3), jp * 1024, v(e2)), ds_read('ds_read_b128', v(ST + 4 * (jp - 1), 4), v(e3))]
    for f in range(8):
        c.append(ds_read('ds_read_b128', v(RS + 4 * f, 4), v(e1), f * 1024))
    c += [salu('s_mul_i32', s(sT2), s(sWv), 6144), salu('s_add_u32', s(sT2), s(sT2), CB_T6), valu('v_add_u32', v(e3), s(sT2), v(ln16))]
    for f in range(6):
        c.append(ds_read('ds_read_b128', v(R6 + 4 * f, 4), v(e3), f * 1024))
    oa, ob, t0, t1 = vM[4], vM[5], vM[6], vM[7]
    c += [valu('v_bfe_u32', v(t0), v(vLANE), 4, 1), valu('v_lshlrev_b32', v(oa), 17, v(t0)),
          valu('v_lshrrev_b32', v(t0), 5, v(vLANE)), valu('v_lshl_add_u32', v(oa), v(t0), 8, v(oa)),
          valu('v_and_b32', v(t0), 15, v(vLANE)), valu('v_lshl_add_u32', v(oa), v(t0), 4, v(oa)),
          salu('s_lshr_b32', s(sT0), s(sWv), 1), salu('s_add_u32', s(sT0), s(sT0), 4), salu('s_lshl_b32', s(sT0), s(sT0), 18),
          valu('v_add_u32', v(ob), s(sT0), v(oa)),
          salu('s_lshl_b32', s(sT0), s(sWv), 18), valu('v_add_u32', v(oa), s(sT0), v(oa))]
    W0 = vS[1]
    lo = vLo[0]
    c += [ds_bpermute(v(t0), v(vBP32), v(lo)), valu('v_add_f32', v(t0), v(t0), v(lo)), valu('v_rcp_f32', v(t1), v(t0))]
    for d in range(4):
        for t in range(2):
            w = W0 + 8 * ((2 * d + t) % 4)
            for i in range(8):
                c += [valu('v_accvgpr_read_b32', v(w + i), a(aOo + 16 * d + 8 * t + i))]
            for i in range(8):
                c += [valu('v_mul_f32', v(w + i), v(t1), v(w + i))]
            for i in range(4):
                c.append(valu('v_cvt_pk_bf16_f32', v(w + i), v(w + 2 * i), v(w + 2 * i + 1)))
            c.append(buf_store('buffer_store_dwordx4', v(w, 4), v(oa), s(sO, 4), s(sOA if d < 2 else sOB), (d & 1) * 1024 + t * 512))
    nmx, fa, fb, ll = vT
    c += [valu('v_min_f32', v(nmx), v(vNMs), v(ST)),
          valu('v_sub_f32', v(fa), v(nmx), v(vNMs)), valu('v_exp_f32', v(fa), v(fa)),
          valu('v_sub_f32', v(fb), v(nmx), v(ST)), valu('v_exp_f32', v(fb), v(fb)),
          valu('v_mul_f32', v(ll), v(fa), v(vLs[0])), valu('v_fma_f32', v(ll), v(fb), v(ST + 1), v(ll)),
          ds_bpermute(v(t0), v(vBP32), v(ll)), valu('v_add_f32', v(ll), v(ll), v(t0)), valu('v_rcp_f32', v(ll), v(ll)),
          valu('v_mul_f32', v(fa), v(fa), v(ll)), valu('v_mul_f32', v(fb), v(fb), v(ll))]
    for d in range(2):
        for t in range(2):
            w = W0 + 8 * ((2 * d + t) % 4)
            for i in range(8):
                c += [valu('v_accvgpr_read_b32', v(w + i), a(aOs + 16 * d + 8 * t + i))]
            for i in range(8):
                c += [valu('v_mul_f32', v(w + i), v(fa), v(w + i)), valu('v_fma_f32', v(w + i), v(fb), v(RS + 16 * d + 8 * t + i), v(w + i))]
            for i in range(4):
                c.append(valu('v_cvt_pk_bf16_f32', v(w + i), v(w + 2 * i), v(w + 2 * i + 1)))
            c.append(buf_store('buffer_store_dwordx4', v(w, 4), v(ob), s(sO, 4), s(sOA), d * 1024 + t * 512))
    f6 = [vT6[0], vT6[1], vL6[1], vLs[1]]
    c += [valu('v_min3_f32', v(nmx), v(vNM6), v(ST + 2), v(ST + 6)), valu('v_min_f32', v(nmx), v(nmx), v(ST + 10))]
    nms = [vNM6, ST + 2, ST + 6, ST + 10]; ls = [vL6[0], ST + 3, ST + 7, ST + 11]
    for i in range(4):
        c += [valu('v_sub_f32', v(f6[i]), v(nmx), v(nms[i])), valu('v_exp_f32', v(f6[i]), v(f6[i]))]
    c.append(valu('v_mul_f32', v(ll), v(f6[0]), v(ls[0])))
    for i in range(1, 4):
        c.append(valu('v_fma_f32', v(ll), v(f6[i]), v(ls[i]), v(ll)))
    c += [ds_bpermute(v(t0), v(vBP16), v(ll)), valu('v_add_f32', v(ll), v(ll), v(t0)),
          ds_bpermute(v(t0), v(vBP32), v(ll)), valu('v_add_f32', v(ll), v(ll), v(t0)), valu('v_rcp_f32', v(ll), v(ll))]
    for i in range(4):
        c.append(valu('v_mul_f32', v(f6[i]), v(f6[i]), v(ll)))
    w = W0
    for i in range(8):
        c.append(valu('v_accvgpr_read_b32', v(w + i), a(aO6 + i)))
    for i in range(8):
        c.append(valu('v_mul_f32', v(w + i), v(f6[0]), v(w + i)))
        for jp in range(1, 4):
            c.append(valu('v_fma_f32', v(w + i), v(f6[jp]), v(R6 + 8 * (jp - 1) + i), v(w + i)))
    for i in range(4):
        c.append(valu('v_cvt_pk_bf16_f32', v(w + i), v(w + 2 * i), v(w + 2 * i + 1)))
    c += [salu('s_lshl_b32', s(sT0), s(sWv), 10), salu('s_add_u32', s(sT0), s(sT0), 12 * 131072),
          buf_store('buffer_store_dwordx4', v(w, 4), v(ln16), s(sO, 4), s(sT0))]
    c += [label(L('end')), raw("s_endpgm", 'branch')]
    main = finalize(c)
    tail = []
    for idx, rname in stubs:
        tail += [label(L('stub%d' % idx)), raw(f"s_call_b64 {s(sRET,2)}, {rname}", 'branch'), raw(f"s_branch {L('back%d' % idx)}", 'branch')]
    for kk in range(6):
        k = kk + 6
        u = unit(k)
        pend = vS[(k + 1) & 1] if k % 3 == 2 else None
        tail += finalize(rare_routine(L('rare%d' % kk), vS[k & 1], vP[k & 1], u['lold'], u['lnew'], 16, u['NM'], 16, u['O'], 64, pend))
    tail += finalize(rare_routine(L('rare6'), vS6, vP6, vL6[0], vL6[1], 8, vNM6, 4, aO6, 32, None, six=True))
    return main + tail


def gen_oproj():
    c = []
    L = lambda x: f"L2_{x}"
    sWO, sA, sOUT = 20, 24, 28
    sw, sb, sn0, smt0, srg = 40, 41, 42, 43, 48
    t0, t1, t2, t3 = 44, 45, 46, 47
    sLB, sKo_, sAo = 50, 51, 52
    vl = 1
    vWD = 2
    vAO = 6
    vRD = 10
    m = list(range(16, 24))
    ACC = 32
    BF = 96
    AF = 192
    DEPTH = 5
    NSLOT = 8
    c.append(raw("s_load_dwordx16 s[4:19], s[0:1], 0", 'smem'))
    c += [raw("s_cmp_ge_u32 s2, 256", 'salu'), raw(f"s_cbranch_scc1 {L('end')}", 'branch')]
    c += [valu('v_and_b32', v(vl), 63, 'v0'), valu('v_lshrrev_b32', v(m[0]), 6, 'v0'), valu('v_readfirstlane_b32', s(sw), v(m[0]))]
    c += [salu('s_and_b32', s(t0), 's2', 7), salu('s_lshr_b32', s(t1), 's2', 3),
          salu('s_and_b32', s(sb), s(t0), 1), salu('s_lshl_b32', s(sb), s(sb), 2),
          salu('s_and_b32', s(t2), s(t0), 2), salu('s_add_u32', s(sb), s(sb), s(t2)),
          salu('s_and_b32', s(t2), s(t1), 1), salu('s_add_u32', s(sb), s(sb), s(t2)),
          salu('s_lshr_b32', s(srg), s(t1), 1), salu('s_and_b32', s(srg), s(srg), 3),
          salu('s_and_b32', s(sn0), s(t0), 4), salu('s_lshr_b32', s(t2), s(t1), 3), salu('s_add_u32', s(sn0), s(sn0), s(t2)),
          salu('s_lshl_b32', s(sn0), s(sn0), 6),
          salu('s_mul_i32', s(smt0), s(srg), 3), raw(f"s_cmp_lg_u32 {s(srg)}, 0", 'salu', {s(srg)}, {'scc'}),
          Ins(f"s_addc_u32 {s(smt0)}, {s(smt0)}, 0", 'salu', {s(smt0), 'scc'}, {s(smt0), 'scc'}),
          salu('s_mul_i32', s(sLB), s(sw), NSLOT * 4096)]
    c += [valu('v_lshrrev_b32', v(m[0]), 3, v(vl)), valu('v_and_b32', v(m[1]), 7, v(vl)),
          valu('v_bfe_u32', v(m[2]), v(vl), 4, 2), valu('v_lshlrev_b32', v(m[2]), 1, v(m[2])), valu('v_xor_b32', v(m[1]), v(m[1]), v(m[2])),
          valu('v_lshlrev_b32', v(m[1]), 4, v(m[1])), valu('v_lshl_add_u32', v(vWD), v(m[0]), 10, v(m[1]))]
    for jj in range(1, 4):
        c.append(valu('v_add_u32', v(vWD + jj), jj * (8192 - 1024), v(vWD)))
    c += [valu('v_lshlrev_b32', v(vAO), 4, v(vl))]
    for mt in range(1, 4):
        c.append(valu('v_add_u32', v(vAO + mt), mt * 131072, v(vAO)))
    c += [salu('s_mov_b32', s(t2), '0x40000000'), raw(f"s_cmp_lg_u32 {s(srg)}, 0", 'salu', {s(srg)}, {'scc'}), salu('s_cselect_b32', s(t2), s(t2), 0),
          valu('v_add_u32', v(vAO + 3), s(t2), v(vAO + 3))]
    c.append(raw("s_waitcnt lgkmcnt(0)", 'wait'))
    c += [salu('s_lshl_b32', s(t0), s(sw), 20), salu('s_lshl_b32', s(t1), s(sn0), 1), salu('s_add_u32', s(t0), s(t0), s(t1))]
    add64(c, 12, s(t0)); c.append(salu('s_sub_u32', s(t1), 4194304, s(t0))); srd(c, sWO, 12, 13, s(t1))
    c += [salu('s_mul_i32', s(t0), s(sb), 13), salu('s_add_u32', s(t0), s(t0), s(smt0)), salu('s_lshl_b32', s(t0), s(t0), 17),
          salu('s_lshl_b32', s(t1), s(sw), 15), salu('s_add_u32', s(t0), s(t0), s(t1))]
    add64(c, 18, s(t0)); srd(c, sA, 18, 19, 3 * 131072 + 32768)
    def loads(kk):
        o = [salu('s_mov_b32', s(sKo_), kk * 32768), salu('s_add_u32', 'm0', s(sLB), (kk % NSLOT) * 4096)]
        for jj in range(4):
            o.append(buf_dma(v(vWD + jj), s(sWO, 4), s(sKo_), jj * 1024, tag=('wo', kk)))
        o.append(salu('s_mov_b32', s(sAo), kk * 1024))
        for mt in range(4):
            o.append(buf_load('buffer_load_dwordx4', v(BF + 16 * (kk % (DEPTH + 1)) + 4 * mt, 4), v(vAO + mt), s(sA, 4), s(sAo)))
        return o
    for kk in range(DEPTH):
        c += loads(kk)
    c += [valu('v_lshrrev_b32', v(m[0]), 4, v(vl)), valu('v_bfe_u32', v(m[1]), v(vl), 2, 2), valu('v_and_b32', v(m[2]), 3, v(vl)),
          valu('v_lshrrev_b32', v(m[3]), 1, v(m[0])), valu('v_lshlrev_b32', v(m[3]), 4, v(m[3])),
          valu('v_and_b32', v(m[4]), 1, v(m[0])), valu('v_lshl_add_u32', v(m[3]), v(m[4]), 2, v(m[3])), valu('v_add_u32', v(m[3]), v(m[3]), v(m[1])),
          valu('v_bfe_u32', v(m[4]), v(m[3]), 1, 2),
          valu('v_lshlrev_b32', v(m[3]), 7, v(m[3])), valu('v_lshl_add_u32', v(m[3]), v(m[2]), 3, v(m[3])), valu('v_add_u32', v(m[3]), s(sLB), v(m[3]))]
    for nt in range(4):
        c += [valu('v_xor_b32', v(m[5]), nt, v(m[4])), valu('v_lshl_add_u32', v(vRD + nt), v(m[5]), 5, v(m[3]))]
    def a_reads(kk):
        o = [wait_tags(('wo', kk))]
        for nt in range(4):
            dst = AF + 16 * (kk & 1) + 4 * nt; off = (kk % NSLOT) * 4096
            o += [ds_read('ds_read_b64_tr_b16', v(dst, 2), v(vRD + nt), off), ds_read('ds_read_b64_tr_b16', v(dst + 2, 2), v(vRD + nt), off + 1024)]
        return o
    c += a_reads(0)
    for kk in range(32):
        mf = []
        for nt in range(4):
            for mt in range(4):
                D = v(ACC + 16 * nt + 4 * mt, 4)
                mf.append(mfma(16, D, v(AF + 16 * (kk & 1) + 4 * nt, 4), v(BF + 16 * (kk % (DEPTH + 1)) + 4 * mt, 4), '0' if kk == 0 else D))
        st = []
        if kk + DEPTH < 32: st.append((loads(kk + DEPTH), 0, 8))
        if kk + 1 < 32: st.append((a_reads(kk + 1), 6, 14))
        c += interleave(mf, st)
    c += [wait_lds_all(), barrier()]
    c += [valu('v_lshlrev_b32', v(m[0]), 4, v(vl)), salu('s_lshl_b32', s(t0), s(sw), 14), valu('v_add_u32', v(m[1]), s(t0), v(m[0]))]
    for nt in range(4):
        for mt in range(4):
            c.append(ds_write('ds_write_b128', v(m[1]), v(ACC + 16 * nt + 4 * mt, 4), (mt * 4 + nt) * 1024))
    c += [salu('s_lshl_b32', s(t0), s(sw), 12), valu('v_add_u32', v(m[1]), s(t0), v(m[0])), wait_lds_all(), barrier()]
    for u in range(4):
        for nt in range(4):
            c.append(ds_read('ds_read_b128', v(BF + 16 * u + 4 * nt, 4), v(m[1]), u * 16384 + nt * 1024))
    c += [salu('s_mul_i32', s(t0), s(sb), 208), salu('s_add_u32', s(t1), s(smt0), s(sw)), salu('s_lshl_b32', s(t1), s(t1), 4), salu('s_add_u32', s(t0), s(t0), s(t1)),
          salu('s_lshl_b32', s(t0), s(t0), 10), salu('s_lshl_b32', s(t1), s(sn0), 1), salu('s_add_u32', s(t0), s(t0), s(t1)),
          valu('v_and_b32', v(m[2]), 15, v(vl)), valu('v_lshlrev_b32', v(m[2]), 10, v(m[2])),
          valu('v_lshrrev_b32', v(m[3]), 4, v(vl)), valu('v_lshl_add_u32', v(m[2]), v(m[3]), 3, v(m[2])),
          valu('v_add_u32', v(m[2]), s(t0), v(m[2])),
          salu('s_mov_b32', s(t2), '0x40000000'), raw(f"s_cmp_lg_u32 {s(srg)}, 0", 'salu', {s(srg)}, {'scc'}), salu('s_cselect_b32', s(t2), s(t2), 0),
          raw(f"s_cmp_eq_u32 {s(sw)}, 3", 'salu', {s(sw)}, {'scc'}), salu('s_cselect_b32', s(t2), s(t2), 0),
          valu('v_add_u32', v(m[2]), s(t2), v(m[2]))]
    srd(c, sOUT, 14, 15, 1703936)
    for nt in range(4):
        for i in range(4):
            r0 = BF + 4 * nt + i
            c += [valu('v_add_f32', v(r0), v(r0), v(r0 + 16)), valu('v_add_f32', v(r0 + 32), v(r0 + 32), v(r0 + 48)), valu('v_add_f32', v(r0), v(r0), v(r0 + 32))]
        r0 = BF + 4 * nt
        c += [valu('v_cvt_pk_bf16_f32', v(r0), v(r0), v(r0 + 1)), valu('v_cvt_pk_bf16_f32', v(r0 + 1), v(r0 + 2), v(r0 + 3)),
              buf_store('buffer_store_dwordx2', v(r0, 2), v(m[2]), s(sOUT, 4), 0, nt * 32)]
    c += [label(L('end')), raw("s_endpgm", 'branch')]
    return finalize(c)


HEADER = open('cdna_kernels/' + NAME + '.s.ref').read().split('; Override launch')[0]

def kernel_block(name, body, nvgpr, accum):
    return f""".globl {name}
.p2align 8
.type {name},@function
{name}:
{body}"""

def desc(name, nvgpr, accum, nsgpr=96):
    return f""".p2align 6
.amdhsa_kernel {name}
  .amdhsa_next_free_vgpr {nvgpr}
  .amdhsa_next_free_sgpr {nsgpr}
  .amdhsa_accum_offset {accum}
  .amdhsa_group_segment_fixed_size 0
  .amdhsa_kernarg_size 64
  .amdhsa_user_sgpr_count 2
  .amdhsa_user_sgpr_kernarg_segment_ptr 1
  .amdhsa_system_sgpr_workgroup_id_x 1
.end_amdhsa_kernel
"""

def build():
    k1 = render(gen_attn())
    out = HEADER
    out += "; @launch kernel=attn_kernel grid=(256,1,1) block=(256,1,1) lds=163840\n"
    if CFG['dump'] is None:
        out += "; @launch kernel=oproj_kernel grid=(256,1,1) block=(256,1,1) lds=131072\n"
    out += '.amdgcn_target "amdgcn-amd-amdhsa--gfx950"\n.text\n'
    out += kernel_block('attn_kernel', k1, 512, 256)
    if CFG['dump'] is None:
        out += kernel_block('oproj_kernel', render(gen_oproj()), 256, 256)
    out += '.section .rodata,"a"\n'
    out += desc('attn_kernel', 512, 256)
    if CFG['dump'] is None:
        out += desc('oproj_kernel', 256, 256)
    return out

if __name__ == '__main__':
    outp = sys.argv[1] if len(sys.argv) > 1 else 'cdna_kernels/' + NAME + '.s'
    for kv in sys.argv[2:]:
        k_, v_ = kv.split('=')
        CFG[k_] = int(v_) if v_.lstrip('-').isdigit() else v_
    open(outp, 'w').write(build())
    print("wrote", outp)
```
